```python
import torch

def _softmax(x, axis=-1):
    return torch.softmax(x, dim=axis)
def _gelu(x):
    return torch.nn.functional.gelu(x, approximate="tanh")
def _silu(x):
    return torch.nn.functional.silu(x)
def _sigmoid(x):
    return torch.sigmoid(x)
def _layernorm(x, axis=-1, eps=1e-5):
    m = x.mean(dim=axis, keepdim=True)
    v = x.var(dim=axis, keepdim=True, unbiased=False)
    return (x - m) / torch.sqrt(v + eps)
def _scatter_add(tgt, idx, src, axis=0):
    return tgt.clone().index_add_(axis, idx, src)
def _segment_sum(src, seg, n):
    out = torch.zeros((n,) + src.shape[1:], dtype=src.dtype)
    return out.index_add_(0, seg, src)
def _pad(x, pw):
    flat = tuple(v for pair in reversed(pw) for v in pair)
    return torch.nn.functional.pad(x, flat)

kernel_name = 'sequential_preLN__mha_block__dense_activation_gelu__prompt'

def setup_inputs():

    _w = (lambda a: (lambda t: t.to(torch.bfloat16) if t.is_floating_point() else t)(torch.as_tensor(a)))
    def _A_setup():
        B, S, D, H = 1, 2048, 1024, 32
        return {
            "x": _w((lambda *s: torch.randn(*s, dtype=torch.bfloat16) * 0.05)(B, S, D)),
            "wqkv": _w((lambda *s: torch.randn(*s, dtype=torch.bfloat16) * 0.05)(D, 3 * D)),
            "wo": _w((lambda *s: torch.randn(*s, dtype=torch.bfloat16) * 0.05)(D, D)),
        }
    _A_in = _A_setup()

    def _B_setup():
        B, S, D, F = 1, 2048, 1024, 3584
        return {
            "x": _w((lambda *s: torch.randn(*s, dtype=torch.bfloat16) * 0.05)(B, S, D)),
            "w1": _w((lambda *s: torch.randn(*s, dtype=torch.bfloat16) * 3.2)(D, F) * (D ** -0.5)),
            "b1": _w((lambda *s: torch.randn(*s, dtype=torch.bfloat16) * 3.2)(F) * 0.01),
            "w2": _w((lambda *s: torch.randn(*s, dtype=torch.bfloat16) * 0.4)(F, D) * (F ** -0.5)),
            "b2": _w((lambda *s: torch.randn(*s, dtype=torch.bfloat16) * 0.4)(D) * 0.01),
        }
    _B_in = _B_setup()

    return {
        "A_x": _A_in["x"],
        "A_wqkv": _A_in["wqkv"],
        "A_wo": _A_in["wo"],
        "B_x": _B_in["x"],
        "B_w1": _B_in["w1"],
        "B_b1": _B_in["b1"],
        "B_w2": _B_in["w2"],
        "B_b2": _B_in["b2"],
    }

def reference(A_x, A_wqkv, A_wo, B_x, B_w1, B_b1, B_w2, B_b2):
    def _A_ref(x, wqkv, wo):
        B, S, D = x.shape
        H = 32
        Dh = D // H
        qkv = (lambda x, *d: x.permute(*d))((x @ wqkv).reshape(B, S, 3, H, Dh), 2, 0, 3, 1, 4)
        q, k, v = qkv[0], qkv[1], qkv[2]
        scores = torch.einsum("bhqd,bhkd->bhqk", q, k) * (Dh ** -0.5)
        p = _softmax(scores, axis=-1)
        o = torch.einsum("bhqk,bhkd->bhqd", p, v)
        return (lambda x, *d: x.permute(*d))(o, 0, 2, 1, 3).reshape(B, S, D) @ wo

    def _B_ref(x, w1, b1, w2, b2):
        h = torch.einsum("bsd,df->bsf", x, w1) + b1
        h = _gelu(h)
        return torch.einsum("bsf,fd->bsd", h, w2) + b2

    x = A_x
    h = x + _A_ref(_layernorm(x, axis=-1), A_wqkv, A_wo)
    h2 = h + _B_ref(_layernorm(h, axis=-1), B_w1, B_b1, B_w2, B_b2)
    return h2
```

```python
import re

class Asm:
    def __init__(self):
        self.lines = []
    def __call__(self, s=""):
        for l in s.split("\n"):
            l = l.strip()
            if l: self.lines.append(l)
        return self
    def c(self, s): self.lines.append("; " + s)
    def text(self): return "\n".join(self.lines)
    def nop(self, n):
        while n > 0:
            k = min(n, 16); self.lines.append("s_nop %d" % (k-1)); n -= k

def vr(b, n=1):
    return "v%d" % b if n == 1 else "v[%d:%d]" % (b, b+n-1)
def sr(b, n=1):
    return "s%d" % b if n == 1 else "s[%d:%d]" % (b, b+n-1)

_reg = re.compile(r"\b([vas])(\d+)\b|\b([vas])\[(\d+):(\d+)\]")
def regs_of(op):
    out = []
    for m in _reg.finditer(op):
        if m.group(1): out.append((m.group(1), int(m.group(2))))
        else: out += [(m.group(3), i) for i in range(int(m.group(4)), int(m.group(5))+1)]
    return out
TRANS = ("v_exp_", "v_log_", "v_rcp_", "v_rsq_", "v_sqrt_", "v_sin_", "v_cos_")
def parse(line):
    l = line.split(";")[0].strip()
    if not l or l.endswith(":") or l.startswith("."): return None
    p = l.split(None, 1)
    mn = p[0]; ops = [o.strip() for o in (p[1].split(",") if len(p) > 1 else [])]
    return mn, ops, l
def classify(mn, ops, raw):
    d = dict(kind="other", dst=[], src=[], mn=mn, raw=raw)
    raw2 = re.sub(r"\b(op_sel|op_sel_hi|neg_lo|neg_hi|quad_perm|offset0|offset1)\S*", "", raw)
    raw2 = re.sub(r"(op_sel|op_sel_hi|neg_lo|neg_hi|quad_perm):\[[^\]]*\]", "", raw)
    p = raw2.split(None, 1)
    ops = [o.strip() for o in p[1].split(",")] if len(p) > 1 else []
    R = [regs_of(o) for o in ops]
    allsrc = lambda i: [r for x in R[i:] for r in x]
    if mn.startswith("v_mfma") or mn.startswith("v_smfmac"):
        d["kind"] = "mfma"; d["dst"] = R[0]; d["A"] = R[1]; d["B"] = R[2]
        d["C"] = R[3] if mn.startswith("v_mfma") else R[0]
        d["src"] = R[1] + R[2] + R[3]
        m = re.search(r"(\d+)x(\d+)x(\d+)", mn)
        if "32x32x16" in mn or "32x32x8" in mn or "32x32x32" in mn: d["pass"] = 8
        elif "16x16x32" in mn or "16x16x16" in mn: d["pass"] = 4
        elif "16x16x64" in mn: d["pass"] = 8
        elif "4x4x4" in mn: d["pass"] = 2
        else: d["pass"] = 16
    elif mn.startswith("v_cmp"):
        d["kind"] = "valu"; d["dst"] = R[0] if ops[0] != "vcc" else [("s", "vcc")]; d["src"] = allsrc(1); d["sdst"] = True
    elif mn.startswith("v_readfirstlane") or mn.startswith("v_readlane"):
        d["kind"] = "valu"; d["dst"] = R[0]; d["src"] = allsrc(1); d["sdst"] = True; d["lane"] = True
    elif mn.startswith("v_permlane"):
        d["kind"] = "valu"; d["dst"] = R[0] + R[1]; d["src"] = R[0] + R[1]; d["perm"] = True
    elif mn.startswith("v_"):
        d["kind"] = "valu"; d["dst"] = list(R[0]) if R else []; d["src"] = allsrc(1)
        if mn.startswith("v_fmac") or mn.startswith("v_dot2c") or mn.startswith("v_pk_fmac"): d["src"] += R[0]
        if "_co_" in mn:
            d["src"] = allsrc(2)
        if mn.startswith("v_cndmask") and "vcc" in raw: d["src"].append(("s", "vcc"))
        if "dpp" in mn or "row_" in raw or "quad_perm" in raw: d["dpp"] = True
        if mn.startswith(TRANS): d["trans"] = True
        if mn.startswith("v_dot"): d["dot"] = True
    elif mn.startswith("ds_read") or mn.startswith("ds_bpermute") or mn.startswith("ds_swizzle"):
        d["kind"] = "ds"; d["dst"] = R[0]; d["src"] = allsrc(1)
    elif mn.startswith("ds_"):
        d["kind"] = "ds"; d["src"] = allsrc(0)
    elif mn.startswith("buffer_load") or mn.startswith("global_load"):
        d["kind"] = "vmem"
        if " lds" in raw or "_lds_" in mn: d["src"] = allsrc(0); d["ldsdma"] = True
        else: d["dst"] = R[0]; d["src"] = allsrc(1)
    elif mn.startswith("buffer_store") or mn.startswith("global_store"):
        d["kind"] = "vmem"; d["src"] = allsrc(0); d["store"] = True
        if mn.startswith("buffer_store"): d["data"] = R[0]
        else: d["data"] = R[1]
        d["wide"] = "x3" in mn or "x4" in mn
    elif mn.startswith("buffer_atomic") or mn.startswith("global_atomic"):
        d["kind"] = "vmem"; d["src"] = allsrc(0)
    elif mn.startswith("s_nop"):
        d["kind"] = "nop"; d["n"] = int(ops[0]) + 1
    elif mn.startswith("s_"):
        d["kind"] = "salu"
        if ops and not mn.startswith(("s_cmp", "s_cbranch", "s_branch", "s_waitcnt", "s_barrier", "s_setprio", "s_sleep", "s_endpgm")):
            if ops[0] == "m0": d["dst"] = [("s", "m0")]
            else: d["dst"] = R[0]
            d["src"] = allsrc(1)
    return d

def lint(text, name=""):
    ins = []
    for ln in text.split("\n"):
        p = parse(ln)
        if p: ins.append(classify(*p))
    errs = []
    def states_between(i, j):
        s = 0
        for k in range(i+1, j):
            s += ins[k]["n"] if ins[k]["kind"] == "nop" else 1
        return s
    W = 24
    for j, b in enumerate(ins):
        for i in range(max(0, j - W), j):
            a = ins[i]
            gap = None
            def need(n, why):
                g = states_between(i, j)
                if g < n: errs.append("%s: need %d have %d [%s]\n   %s\n   %s" % (name, n, g, why, a["raw"], b["raw"]))
            ad = set(a["dst"]);
            if a["kind"] == "valu":
                vd = {r for r in ad if r[0] in "va"}
                sd = {r for r in ad if r[0] == "s"}
                if b["kind"] == "mfma" and vd & set(b["src"]): need(2, "valu->mfma")
                if b.get("perm") and vd & set(b["src"]): need(2, "valu->permlane")
                if b.get("dpp") and vd & set(b["src"]): need(2, "valu->dpp")
                if b.get("lane") and vd & set(b["src"]): need(1, "valu->readlane")
                if a.get("trans") and b["kind"] in ("valu","mfma") and not False and vd & set(b["src"]) : need(1, "trans->use")
                if a.get("dot") and b["kind"] in ("valu","mfma","vmem","ds") and (vd & (set(b["src"]) | set(b["dst"]))):
                    if not (b["mn"] == a["mn"] and not (vd & set(b["src"][:-1] if False else []))): need(3, "dot->other")
                if a.get("sdst") or "_co_" in a["mn"]:
                    s2 = sd | ({("s","vcc")} if ("_co_" in a["mn"] or "vcc" in a["raw"].split(",")[0]) else set())
                    if b["kind"] == "vmem" and s2 & set(b["src"]): need(5, "valu sgpr->vmem")
                    if b["kind"] == "valu" and s2 & set(b["src"]): need(2, "valu sgpr->valu const")
            if a["kind"] == "mfma":
                p = a["pass"]
                if b["kind"] == "mfma":
                    if ad & (set(b["A"]) | set(b["B"])): need({2:5,4:8,8:12,16:20}[p], "mfma D->mfma A/B")
                    if ad & set(b["C"]):
                        same = (a["dst"] == b["C"] and a["pass"] == b["pass"])
                        if not same: need({2:4,4:6,8:10,16:18}[p], "mfma D->mfma C overlap")
                        elif p == 2: need(2, "mfma 2pass chain")
                    elif ad & set(b["dst"]): need({2:5,4:8,8:12,16:20}[p], "mfma D->mfma D (WAW)")
                elif b["kind"] in ("valu", "vmem", "ds"):
                    if ad & (set(b["src"]) | set(b["dst"])): need({2:5,4:8,8:12,16:20}[p], "mfma D->valu/mem")
                    if b["kind"] == "valu" and set(a["C"]) & set(b["dst"]): need({2:1,4:3,8:7,16:15}[p], "mfma C WAR valu")
            if a["kind"] == "salu" and ("s","m0") in ad and b.get("ldsdma"): need(1, "m0->lds dma")
            if a.get("store") and a.get("wide") and b["kind"] in ("valu",) and set(a["data"]) & set(b["dst"]): need(2, "store data WAR")
            if a.get("store") and a.get("wide") and b["kind"] in ("ds","vmem","mfma") and set(a["data"]) & set(b["dst"]): need(1, "store data WAR")
    return errs
```

```python
from common import *
Q0, KB, VB, P, SEL, L, SB, CN, O = 8, 16, 32, 48, 56, 60, 64, 96, 112
SLOT = 16384; NSLOT = 4
FLAG = NSLOT*SLOT
def Kr(t, s): return KB + (t & 1)*8 + s*4
def Vr(t, s): return VB + (t & 1)*8 + s*4
def Sr(t): return SB + (t & 1)*16

def rdK(j, s):
    base = "v4" if j < 4 else "v5"
    return f"ds_read_b128 {vr(Kr(j,s),4)}, {base} offset:{(j & 3)*2048 + s*1024}"
def rdV(j, s):
    base = "v4" if j < 4 else "v5"
    return f"ds_read_b128 {vr(Vr(j,s),4)}, {base} offset:{8192 + (j & 3)*2048 + s*1024}"
def qk(t, s):
    S = Sr(t)
    c = vr(CN,16) if s == 0 else vr(S,16)
    return f"v_mfma_f32_32x32x16_bf16 {vr(S,16)}, {vr(Kr(t,s),4)}, {vr(Q0+4*s,4)}, {c}"
def pv(t, s): return f"v_mfma_f32_32x32x16_bf16 {vr(O,16)}, {vr(Vr(t,s),4)}, {vr(P+4*s,4)}, {vr(O,16)}"
def ls(s): return f"v_mfma_f32_16x16x32_bf16 {vr(L,4)}, {vr(SEL,4)}, {vr(P+4*s,4)}, {vr(L,4)}"
def ex(t, i): return f"v_exp_f32 v{Sr(t)+i}, v{Sr(t)+i}"
def cv(t, i): return f"v_cvt_pk_bf16_f32 v{P+i}, v{Sr(t)+2*i}, v{Sr(t)+2*i+1}"

def iteration(a, j, variant):
    t = j
    if variant == 0:
        a("s_waitcnt lgkmcnt(2)")
        a(qk(t+1, 0))
        a(ex(t,0)); a(ex(t,1)); a(ex(t,2))
        a(pv(t-1, 1))
        a(ex(t,3)); a(cv(t,0))
        if j == 2:
            a("s_waitcnt vmcnt(2)")
            a("s_barrier")
        a(rdK(j+2, 0)); a(rdK(j+2, 1))
        a(ls(1))
        a(cv(t,1)); a(ex(t,4)); a(ex(t,5))
        a(qk(t+1, 1))
        a(ex(t,6)); a(ex(t,7)); a(cv(t,2));
        if j == 2:
            a("s_add_u32 m0, s20, s21")
            a("s_add_u32 s22, s22, 8192")
            a("buffer_load_dwordx4 v3, s[12:15], s22 offen lds")
            a("s_add_u32 m0, m0, 8192")
            a(f"s_add_u32 s21, s21, {SLOT}")
            a("buffer_load_dwordx4 v3, s[16:19], s22 offen lds")
            a(f"s_and_b32 s21, s21, {NSLOT*SLOT-1}")
        a(cv(t,3))
        a("s_waitcnt lgkmcnt(2)")
        a(ex(t,8)); a(ex(t,9))
        a(pv(t, 0))
        a(rdV(j+1, 0));
        a(ex(t,10)); a(ex(t,11)); a(cv(t,4))
        a(ls(0))
        a(cv(t,5)); a(ex(t,12)); a(ex(t,13)); a(ex(t,14)); a(ex(t,15))
        a(rdV(j+1, 1))
        a(cv(t,6)); a(cv(t,7))

def attn(variant=0):
    a = Asm()
    a("s_cmp_ge_u32 s2, 256")
    a("s_cbranch_scc1 ATT_END")
    a(f"s_load_dwordx2 s[4:5], s[0:1], {KA_WS}")
    a("v_lshrrev_b32 v1, 6, v0")
    a("v_and_b32 v2, 63, v0")
    a("v_readfirstlane_b32 s3, v1")
    a("s_and_b32 s6, s2, 7"); a("s_lshr_b32 s7, s2, 3")
    a("s_lshl_b32 s8, s6, 2"); a("s_lshr_b32 s9, s7, 3"); a("s_add_u32 s8, s8, s9")
    a("s_and_b32 s9, s7, 7")
    a("s_lshl_b32 s9, s9, 3"); a("s_add_u32 s9, s9, s3")
    a("v_lshlrev_b32 v3, 4, v2")
    a("s_lshl_b32 s10, s8, 17")
    a("s_waitcnt lgkmcnt(0)")
    srd(a, 12, 4, add_imm=WS_KF, add_s=10, nrec=131072)
    srd(a, 16, 4, add_imm=WS_VF, add_s=10, nrec=131072)
    srd(a, 24, 4, nrec=16*MB)
    a("s_lshl_b32 s11, s9, 11"); a("s_add_u32 s11, s11, s10")
    a(f"buffer_load_dwordx4 {vr(Q0,4)}, v3, s[24:27], s11 offen")
    a(f"buffer_load_dwordx4 {vr(Q0+4,4)}, v3, s[24:27], s11 offen offset:1024")
    a("s_lshl_b32 s20, s3, 10")
    a("s_lshl_b32 s22, s3, 10")
    a("s_mov_b32 s21, 0")
    for st in range(3):
        a("s_add_u32 m0, s20, s21")
        a("s_nop 0")
        a("buffer_load_dwordx4 v3, s[12:15], s22 offen lds")
        a("s_add_u32 m0, m0, 8192")
        a(f"s_add_u32 s21, s21, {SLOT}")
        a("buffer_load_dwordx4 v3, s[16:19], s22 offen lds")
        if st < 2: a("s_add_u32 s22, s22, 8192")
    a("v_and_b32 v6, 3, v2")
    a("v_bfe_u32 v7, v2, 2, 1")
    a("v_bfe_u32 v1, v2, 4, 1")
    a("v_xor_b32 v7, v7, v1")
    a("v_or_b32 v6, v6, v7")
    a("v_mov_b32 v7, 0x3f803f80")
    a("v_cmp_eq_u32 vcc, 0, v6")
    a.nop(2)
    a(f"v_cndmask_b32 v{SEL}, 0, v7, vcc")
    for i in range(1,4): a(f"v_mov_b32 v{SEL+i}, v{SEL}")
    for i in range(4): a(f"v_mov_b32 v{L+i}, 0")
    for i in range(16): a(f"v_mov_b32 v{O+i}, 0")
    for i in range(8): a(f"v_mov_b32 v{P+i}, 0")
    for i in range(8): a(f"v_mov_b32 v{Vr(-1,0)+i}, 0")
    a("v_mov_b32 v4, v3")
    a(f"v_add_u32 v5, {SLOT}, v3")
    a(f"v_mov_b32 v6, 0"); a(f"v_mov_b32 v7, {FLAG}")
    a("ds_write_b32 v7, v6")
    a("s_mov_b32 s23, 0")
    a("s_waitcnt vmcnt(4) lgkmcnt(0)")
    a("s_barrier")
    a(rdK(0,0)); a(rdK(0,1)); a(rdK(1,0)); a(rdK(1,1)); a(rdV(0,0)); a(rdV(0,1))
    a("s_waitcnt lgkmcnt(4)")
    S = Sr(0)
    a(f"v_mfma_f32_32x32x16_bf16 {vr(S,16)}, {vr(Kr(0,0),4)}, {vr(Q0,4)}, 0")
    a(f"v_mfma_f32_32x32x16_bf16 {vr(S,16)}, {vr(Kr(0,1),4)}, {vr(Q0+4,4)}, {vr(S,16)}")
    a.nop(12)
    a(f"v_max3_f32 v6, v{S}, v{S+1}, v{S+2}")
    for i in range(3, 15, 2): a(f"v_max3_f32 v6, v6, v{S+i}, v{S+i+1}")
    a(f"v_max_f32 v6, v6, v{S+15}")
    a("v_mov_b32 v7, v6")
    a.nop(2)
    a("v_permlane32_swap_b32 v6, v7")
    a.nop(1)
    a("v_max_f32 v6, v6, v7")
    for i in range(16): a(f"v_sub_f32 v{CN+i}, 0, v6")
    a.nop(2)
    a(qk(0,0)); a(qk(0,1))
    a.nop(10)
    a("s_mov_b32 s28, 16")
    a(".p2align 4")
    a("ATT_LOOP:")
    for j in range(4):
        iteration(a, j, variant)
    a("v_mov_b32 v4, v5")
    a(f"s_add_u32 s23, s23, {SLOT}")
    a(f"s_add_u32 s29, s23, {SLOT}")
    a(f"s_and_b32 s29, s29, {NSLOT*SLOT-1}")
    a(f"s_and_b32 s23, s23, {NSLOT*SLOT-1}")
    a("v_add_u32 v5, s29, v3")
    a("s_sub_u32 s28, s28, 1")
    a("s_cmp_lg_u32 s28, 0")
    a("s_cbranch_scc1 ATT_LOOP")
    a.nop(2)
    a(pv(63, 1)); a(ls(1))
    a("s_waitcnt vmcnt(0) lgkmcnt(0)")
    a.nop(12)
    a("s_mov_b32 s30, 0x5d800000")
    a(f"v_cmp_gt_f32 vcc, s30, v{L}")
    a.nop(4)
    a("s_cmp_eq_u64 vcc, exec")
    a("s_cbranch_scc1 ATT_OK")
    a("v_mov_b32 v6, 1"); a(f"v_mov_b32 v7, {FLAG}")
    a("ds_write_b32 v7, v6")
    a("ATT_OK:")
    a("s_waitcnt lgkmcnt(0)")
    a("s_barrier")
    a(f"v_mov_b32 v7, {FLAG}")
    a("ds_read_b32 v6, v7")
    a("s_waitcnt lgkmcnt(0)")
    a("v_readfirstlane_b32 s30, v6")
    a.nop(2)
    a("s_cmp_eq_u32 s30, 0")
    a("s_cbranch_scc1 ATT_FIN")
    a("s_barrier")
    for i in range(4): a(f"v_mov_b32 v{L+i}, 0")
    for i in range(16): a(f"v_mov_b32 v{O+i}, 0")
    a("v_mov_b32 v6, 0xff7fffff")
    a("s_lshl_b32 s22, s3, 10")
    a("s_mov_b32 s28, 16")
    a("ATT_SLOW:")
    a("s_mov_b32 m0, s20")
    a("s_nop 0")
    a("buffer_load_dwordx4 v3, s[12:15], s22 offen lds")
    a("s_add_u32 m0, m0, 8192")
    a("s_nop 0")
    a("buffer_load_dwordx4 v3, s[16:19], s22 offen lds")
    a("s_add_u32 s22, s22, 8192")
    a("s_waitcnt vmcnt(0)")
    a("s_barrier")
    a("v_mov_b32 v4, v3")
    for j in range(4):
        a(rdK(j,0)); a(rdK(j,1)); a(rdV(j,0)); a(rdV(j,1))
        a("s_waitcnt lgkmcnt(0)")
        S = Sr(j)
        a(f"v_mfma_f32_32x32x16_bf16 {vr(S,16)}, {vr(Kr(j,0),4)}, {vr(Q0,4)}, 0")
        a(f"v_mfma_f32_32x32x16_bf16 {vr(S,16)}, {vr(Kr(j,1),4)}, {vr(Q0+4,4)}, {vr(S,16)}")
        a.nop(12)
        a(f"v_max3_f32 v7, v{S}, v{S+1}, v{S+2}")
        for i in range(3, 15, 2): a(f"v_max3_f32 v7, v7, v{S+i}, v{S+i+1}")
        a(f"v_max3_f32 v7, v7, v{S+15}, v6")
        a("v_mov_b32 v1, v7")
        a.nop(2)
        a("v_permlane32_swap_b32 v7, v1")
        a.nop(1)
        a("v_max_f32 v7, v7, v1")
        a("v_sub_f32 v1, v6, v7")
        a("v_exp_f32 v1, v1")
        a("v_mov_b32 v6, v7")
        for i in range(16): a(f"v_sub_f32 v{S+i}, v{S+i}, v7")
        for i in range(16): a(f"v_exp_f32 v{S+i}, v{S+i}")
        for i in range(16): a(f"v_mul_f32 v{O+i}, v{O+i}, v1")
        for i in range(4): a(f"v_mul_f32 v{L+i}, v{L+i}, v1")
        for i in range(8): a(cv(j,i))
        a.nop(2)
        a(pv(j,0)); a(pv(j,1)); a(ls(0)); a(ls(1))
        a.nop(12)
    a("s_barrier")
    a("s_sub_u32 s28, s28, 1")
    a("s_cmp_lg_u32 s28, 0")
    a("s_cbranch_scc1 ATT_SLOW")
    a("ATT_FIN:")
    a(f"v_rcp_f32 v6, v{L}")
    a.nop(1)
    for i in range(16): a(f"v_mul_f32 v{O+i}, v{O+i}, v6")
    for i in range(8): a(f"v_cvt_pk_bf16_f32 v{P+i}, v{O+2*i}, v{O+2*i+1}")
    a("s_lshl_b32 s30, s9, 6"); a("s_lshl_b32 s31, s8, 1"); a("s_add_u32 s30, s30, s31"); a("s_lshl_b32 s30, s30, 10")
    a(f"s_add_u32 s30, s30, {WS_OF}")
    a(f"buffer_store_dwordx4 {vr(P,4)}, v3, s[24:27], s30 offen")
    a(f"buffer_store_dwordx4 {vr(P+4,4)}, v3, s[24:27], s30 offen offset:1024")
    a("ATT_END:")
    return Kernel("attn_kernel", a.text(), 256, 512, FLAG + 64, 128)
```

```python
from asmlib import *
KA_X, KA_WQKV, KA_WO, KA_BX, KA_W1, KA_B1, KA_W2, KA_B2, KA_OUT, KA_DBG, KA_WS = [8*i for i in range(11)]
MB = 1 << 20
WS_QF, WS_KF, WS_VF, WS_OF, WS_HF, WS_XN = 0*MB, 4*MB, 8*MB, 12*MB, 16*MB, 20*MB
WS_H1F = 24*MB
WS_CS1 = 40*MB
WS_PST = 41*MB
S_, D_, F_ = 2048, 1024, 3584

class Kernel:
    def __init__(self, name, body, grid, block, lds, vgpr, sgpr=96):
        self.name, self.body, self.grid, self.block, self.lds, self.vgpr, self.sgpr = name, body, grid, block, lds, vgpr, sgpr
    def code(self):
        return f""".text
.globl {self.name}
.p2align 8
.type {self.name},@function
{self.name}:
{self.body}
s_endpgm
"""
    def desc(self):
        acc = (self.vgpr + 3)//4*4
        return f""".amdhsa_kernel {self.name}
  .amdhsa_next_free_vgpr {self.vgpr}
  .amdhsa_next_free_sgpr {self.sgpr}
  .amdhsa_accum_offset {acc}
  .amdhsa_group_segment_fixed_size 0
  .amdhsa_kernarg_size 88
  .amdhsa_user_sgpr_count 2
  .amdhsa_user_sgpr_kernarg_segment_ptr 1
  .amdhsa_system_sgpr_workgroup_id_x 1
  .amdhsa_float_denorm_mode_32 3
.end_amdhsa_kernel
"""

def srd(a, d, ptr, add_imm=None, add_s=None, nrec=None):
    a(f"s_mov_b32 s{d}, s{ptr}")
    a(f"s_mov_b32 s{d+1}, s{ptr+1}")
    if add_imm:
        a(f"s_add_u32 s{d}, s{d}, {add_imm}")
        a(f"s_addc_u32 s{d+1}, s{d+1}, 0")
    if add_s is not None:
        a(f"s_add_u32 s{d}, s{d}, s{add_s}")
        a(f"s_addc_u32 s{d+1}, s{d+1}, 0")
    if isinstance(nrec, str): a(f"s_mov_b32 s{d+2}, {nrec}")
    else: a(f"s_mov_b32 s{d+2}, {nrec}")
    a(f"s_mov_b32 s{d+3}, 0x20000")

HEADER = open(__file__.replace("common.py", "header.txt")).read()

def build_file(kernels):
    s = HEADER
    for k in kernels:
        s += f"; @launch kernel={k.name} grid=({k.grid},1,1) block=({k.block},1,1) lds={k.lds}\n"
    s += '.amdgcn_target "amdgcn-amd-amdhsa--gfx950"\n'
    seen = []
    for k in kernels:
        if k.name in seen: continue
        seen.append(k.name)
        s += k.code()
    s += ".text\n.fill 64, 4, 0xBF800000\n"
    s += '.section .rodata,"a"\n.p2align 6\n'
    seen = []
    for k in kernels:
        if k.name in seen: continue
        seen.append(k.name)
        s += ".p2align 6\n" + k.desc()
    return s
```

```python
from common import *

class Cfg: pass

def lds_w_imm(c, f, s, q):
    WB = 16384
    if c.layout == 'pair':
        pc, lo = c.fb_pair(f)
        if c.order == 'dperm':
            return WB + (pc*8 + 2*s + q)*1024 + lo*256
        else:
            return WB + (pc*8 + 2*s)*1024 + q*512 + lo*256
    else:
        if c.order == 'dperm': return WB + (4*s + 2*q)*2048 + f*256
        else: return WB + (4*s + q)*2048 + f*256

def gemm(c):
    a = Asm()
    N = c.name.upper()
    NS = c.K // 64
    WB = 16384
    SLOT = WB + (c.npair*8192 if c.layout == 'pair' else 32768)
    c.SLOT = SLOT
    c.STAT = c.S*SLOT
    nd = 4 + (c.npair*2 if c.layout == 'pair' else 8)
    TBS = (c.K//16)*1024
    a(f"s_cmp_ge_u32 s2, 256")
    a(f"s_cbranch_scc1 {N}_END")
    a(f"s_load_dwordx2 s[4:5], s[0:1], {c.w_arg}")
    a(f"s_load_dwordx2 s[6:7], s[0:1], {KA_WS}")
    for (sreg, arg) in c.extra_ptrs:
        a(f"s_load_dwordx2 s[{sreg}:{sreg+1}], s[0:1], {arg}")
    a("v_lshrrev_b32 v1, 6, v0")
    a("v_and_b32 v2, 63, v0")
    a("v_readfirstlane_b32 s3, v1")
    c.map_tile(a)
    a("s_waitcnt lgkmcnt(0)")
    a("s_cmp_ge_u32 s3, 4")
    a(f"s_cbranch_scc1 {N}_PROD")
    nt, nf = c.nt, c.nf
    a("s_setprio 1")
    if c.WF == 2:
        a("s_lshr_b32 s32, s3, 1")
        a("s_and_b32 s33, s3, 1")
    else:
        a("s_mov_b32 s32, s3"); a("s_mov_b32 s33, 0")
    vTB, vWBs, vT, vW = 3, 4, 5, 6
    a(f"s_mul_i32 s34, s32, {nt*4096}")
    a("v_lshlrev_b32 v3, 4, v2")
    a("v_add_u32 v3, s34, v3")
    a("v_and_b32 v7, 3, v2")
    a("v_lshlrev_b32 v4, 3, v7")
    a("v_bfe_u32 v7, v2, 2, 2")
    a("v_lshl_add_u32 v4, v7, 6, v4")
    a("v_bfe_u32 v7, v2, 4, 1")
    a("v_lshl_add_u32 v4, v7, 5, v4")
    a("v_lshrrev_b32 v7, 5, v2")
    hsh = {('pair','dperm'):9, ('pair','nat'):10, ('quad','dperm'):11, ('quad','nat'):12}[(c.layout, c.order)]
    a(f"v_lshl_add_u32 v4, v7, {hsh}, v4")
    c.w_wave_part(a)
    a("v_add_u32 v4, s35, v4")
    a("v_mov_b32 v5, v3")
    a("v_mov_b32 v6, v4")
    T0 = 8
    W0 = T0 + 2*nt*4
    ACC = W0 + 2*nf*4
    ACC = (ACC + 3)//4*4
    c.ACC = ACC; c.FREE = ACC + nt*nf*16
    c.T0, c.W0 = T0, W0
    def Treg(b, t): return T0 + (b*nt + t)*4
    def Wreg(b, f): return W0 + (b*nf + f)*4
    def acc(t, f): return ACC + (f*nt + t)*16
    c.acc = acc
    if c.zero_acc:
        for r in range(nt*nf*16): a(f"v_mov_b32 v{ACC+r}, 0")
    c.cons_prologue(a)
    def reads(s):
        b = s & 1
        L = []
        def rt(t): L.append((f"ds_read_b128 {vr(Treg(b,t),4)}, v{vT} offset:{t*4096 + s*1024}", ('T', t)))
        def rw(f):
            for q in range(2):
                L.append((f"ds_read_b64_tr_b16 {vr(Wreg(b,f)+2*q,2)}, v{vW} offset:{lds_w_imm(c,f,s,q)}", ('W', f)))
        rt(0); rw(0)
        for t in range(1, nt): rt(t)
        for f in range(1, nf): rw(f)
        return L
    def mfma(b, t, f):
        if c.swap(f): return f"v_mfma_f32_32x32x16_bf16 {vr(acc(t,f),16)}, {vr(Treg(b,t),4)}, {vr(Wreg(b,f),4)}, {vr(acc(t,f),16)}"
        return f"v_mfma_f32_32x32x16_bf16 {vr(acc(t,f),16)}, {vr(Wreg(b,f),4)}, {vr(Treg(b,t),4)}, {vr(acc(t,f),16)}"
    a("s_mov_b32 s14, 0")
    a(f"s_mov_b32 s15, {NS}")
    a("s_barrier")
    first = reads(0)
    for ins, _ in first: a(ins)
    a(".p2align 4")
    a(f"{N}_CLOOP:")
    order = [(t, f) for f in range(nf) for t in range(nt)]
    nm = len(order)
    for s in range(4):
        b = s & 1
        prev = reads(s)
        nxt = reads((s+1) & 3)
        issued = 0
        done_idx = -1
        bar_at = max(1, c.bar_at) if s == 3 else 0
        ngaps = max(1, min(nm - max(bar_at - 1, 0), c.read_gaps))
        for m, (t, f) in enumerate(order):
            idx = max(i for i, (_, tag) in enumerate(prev) if tag in (('T', t), ('W', f)))
            if idx > done_idx:
                a(f"s_waitcnt lgkmcnt({min(15, (len(prev) - 1 - idx) + issued)})")
                done_idx = idx
            a(mfma(b, t, f))
            if s == 3 and m + 1 == bar_at:
                if done_idx < len(prev) - 1: a("s_waitcnt lgkmcnt(0)")
                done_idx = len(prev) - 1
                a("s_barrier")
                a(f"s_add_u32 s14, s14, {SLOT}")
                a(f"s_cmp_eq_u32 s14, {c.S*SLOT}")
                a("s_cselect_b32 s14, 0, s14")
                a(f"v_add_u32 v{vT}, s14, v{vTB}")
                a(f"v_add_u32 v{vW}, s14, v{vWBs}")
            if s == 3 and m + 1 < bar_at: continue
            g = m - (bar_at - 1 if s == 3 else 0)
            k1 = len(nxt) if g + 1 >= ngaps else -(-len(nxt)*(g+1)//ngaps)
            while issued < k1:
                a(nxt[issued][0]); issued += 1
        assert issued == len(nxt)
    a("s_sub_u32 s15, s15, 1")
    a("s_cmp_lg_u32 s15, 0")
    a(f"s_cbranch_scc1 {N}_CLOOP")
    a("s_waitcnt lgkmcnt(0)")
    a("s_setprio 0")
    a.nop(12)
    c.epilogue(a)
    a(f"s_branch {N}_END")
    a(f"{N}_PROD:")
    a("s_sub_u32 s3, s3, 4")
    srd(a, 16, 6, add_imm=c.tok_off, nrec=64*TBS)
    srd(a, 20, 4, nrec=c.K*c.w_rs)
    a("v_lshlrev_b32 v3, 4, v2")
    a("s_lshl_b32 s32, s12, 2")
    a("s_add_u32 s32, s32, s3")
    a(f"s_mul_i32 s32, s32, {TBS}")
    a("s_lshl_b32 s33, s3, 12")
    a("v_bfe_u32 v7, v2, 2, 2")
    a("v_and_b32 v8, 3, v2")
    a("v_lshrrev_b32 v9, 4, v2")
    a(f"s_mov_b32 s34, {c.w_rs}")
    if c.layout == 'pair':
        a("v_lshrrev_b32 v10, 1, v9")
        a("v_lshl_add_u32 v7, v10, 2, v7")
        a("v_and_b32 v9, 1, v9")
    a("v_mul_lo_u32 v7, v7, s34")
    a("v_lshl_add_u32 v7, v8, 4, v7")
    a("v_lshl_add_u32 v7, v9, 6, v7")
    a(f"s_mul_i32 s35, s3, {16*c.w_rs}")
    c.w_col_base(a)
    vWo = 12
    wd = []
    if c.layout == 'pair':
        for pc in range(c.npair):
            for k2 in range(2):
                r = vWo + len(wd)
                a(f"s_add_u32 s40, s35, s{36+pc}")
                if k2: a(f"s_add_u32 s40, s40, {8*c.w_rs}")
                a(f"v_add_u32 v{r}, s40, v7")
                wd.append((r, (pc*8 + k2)*1024))
        a("s_lshl_b32 s41, s3, 11")
    else:
        for kk in range(4):
            for hf in range(2):
                r = vWo + len(wd)
                a(f"s_add_u32 s40, s35, s36")
                a(f"s_add_u32 s40, s40, {kk*4*c.w_rs + hf*256}")
                a(f"v_add_u32 v{r}, s40, v7")
                wd.append((r, kk*2048 + hf*1024))
        a("s_lshl_b32 s41, s3, 13")
    a(f"s_add_u32 s41, s41, {WB}")
    a("s_mov_b32 s42, 0")
    a("s_mov_b32 s14, 0")
    def issue():
        a("s_add_u32 m0, s14, s33")
        a("s_add_u32 s43, s14, s41")
        for j in range(4):
            a(f"buffer_load_dwordx4 v3, s[16:19], s32 offen offset:{1024*j} lds")
        for (r, lc) in wd:
            a(f"s_add_u32 m0, s43, {lc}")
            a("s_nop 0")
            a(f"buffer_load_dwordx4 v{r}, s[20:23], s42 offen lds")
        a("s_add_u32 s32, s32, 4096")
        a(f"s_add_u32 s42, s42, {64*c.w_rs}")
        a(f"s_add_u32 s14, s14, {SLOT}")
        a(f"s_cmp_eq_u32 s14, {c.S*SLOT}")
        a("s_cselect_b32 s14, 0, s14")
    for st in range(c.S): issue()
    c.prod_prologue(a)
    a(f"s_waitcnt vmcnt({nd*(c.S-1) + c.prod_extra_vm})")
    a("s_barrier")
    a(f"s_mov_b32 s15, {NS - c.S}")
    a(f"{N}_PLOOP:")
    a(f"s_waitcnt vmcnt({nd*(c.S-2)})")
    a("s_barrier")
    issue()
    a("s_sub_u32 s15, s15, 1")
    a("s_cmp_lg_u32 s15, 0")
    a(f"s_cbranch_scc1 {N}_PLOOP")
    for k in range(NS - c.S, NS):
        a(f"s_waitcnt vmcnt({nd*max(0, NS-2-k)})")
        a("s_barrier")
    a(f"{N}_END:")
    return Kernel(c.name + "_kernel", a.text(), 256, 512, c.STAT + c.stat_bytes, 256 if c.vgpr is None else c.vgpr)
```

```python
from common import *
def xreduce(a, regs, tmp, steps=(8,16,32)):
    for st in steps:
        if st < 32:
            for r, t in zip(regs, tmp):
                a(f"ds_swizzle_b32 v{t}, v{r} offset:{(st << 10) | 0x1f}")
            a("s_waitcnt lgkmcnt(0)")
            for r, t in zip(regs, tmp):
                a(f"v_add_f32 v{r}, v{r}, v{t}")
        else:
            for r, t in zip(regs, tmp):
                a(f"v_mov_b32 v{t}, v{r}")
            a.nop(2)
            for r, t in zip(regs, tmp):
                a(f"v_permlane32_swap_b32 v{r}, v{t}")
            a.nop(1)
            for r, t in zip(regs, tmp):
                a(f"v_add_f32 v{r}, v{r}, v{t}")

def k0():
    a = Asm()
    a("s_cmp_ge_u32 s2, 256")
    a("s_cbranch_scc1 K0_END")
    a(f"s_load_dwordx2 s[4:5], s[0:1], {KA_X}")
    a(f"s_load_dwordx2 s[6:7], s[0:1], {KA_W1}")
    a(f"s_load_dwordx2 s[8:9], s[0:1], {KA_WS}")
    a("v_lshrrev_b32 v1, 6, v0")
    a("v_and_b32 v2, 63, v0")
    a("v_readfirstlane_b32 s3, v1")
    a("v_and_b32 v3, 7, v2")
    a("v_lshrrev_b32 v4, 3, v2")
    a("v_lshlrev_b32 v5, 11, v3")
    a("v_lshl_add_u32 v5, v4, 4, v5")
    a("v_lshl_add_u32 v5, v1, 9, v5")
    a("v_lshl_add_u32 v6, v1, 6, v4")
    a("s_movk_i32 s10, 7168")
    a("v_mul_lo_u32 v6, v6, s10")
    a("v_lshl_add_u32 v6, v3, 4, v6")
    a("s_waitcnt lgkmcnt(0)")
    srd(a, 12, 4, nrec=S_*D_*2)
    srd(a, 16, 6, nrec=D_*F_*2)
    srd(a, 20, 8, add_imm=WS_XN, nrec=4*MB)
    srd(a, 24, 8, add_imm=WS_CS1, nrec=4*F_*4)
    a("s_lshl_b32 s28, s2, 14")
    for j in range(4):
        a(f"buffer_load_dwordx4 v[{10+4*j}:{13+4*j}], v5, s[12:15], s28 offen offset:{128*j}")
    a("s_cmp_ge_u32 s2, 224")
    a("s_cbranch_scc1 K0_NOB0")
    a("s_mul_hi_u32 s30, s2, 76695845")
    a("s_mul_i32 s31, s30, 56")
    a("s_sub_u32 s31, s2, s31")
    a(f"s_mul_i32 s32, s30, {256*7168}")
    a("s_lshl_b32 s33, s31, 7")
    a("s_add_u32 s32, s32, s33")
    for j in range(8):
        a(f"buffer_load_dwordx4 v[{64+4*j}:{67+4*j}], v6, s[16:19], s32 offen")
        if j < 7: a(f"s_add_u32 s32, s32, {8*7168}")
    a("s_waitcnt vmcnt(8)")
    a("s_branch K0_A")
    a("K0_NOB0:")
    a("s_waitcnt vmcnt(0)")
    a("K0_A:")
    a("s_mov_b32 s34, 0xffff0000")
    for r in range(16):
        a(f"v_lshlrev_b32 v{32+2*r}, 16, v{10+r}")
        a(f"v_and_b32 v{33+2*r}, s34, v{10+r}")
    a("v_mov_b32 v100, 0"); a("v_mov_b32 v101, 0"); a("v_mov_b32 v102, 0"); a("v_mov_b32 v103, 0")
    for r in range(16):
        a(f"v_pk_add_f32 v[100:101], v[{32+2*r}:{33+2*r}], v[100:101]")
        a(f"v_pk_fma_f32 v[102:103], v[{32+2*r}:{33+2*r}], v[{32+2*r}:{33+2*r}], v[102:103]")
    a("v_add_f32 v100, v100, v101")
    a("v_add_f32 v101, v102, v103")
    xreduce(a, [100, 101], [104, 105])
    a("v_lshlrev_b32 v104, 3, v3")
    a("v_lshl_add_u32 v105, v1, 6, v104")
    a("ds_write_b64 v105, v[100:101]")
    a("s_waitcnt lgkmcnt(0)")
    a("s_barrier")
    for w in range(4):
        a(f"ds_read_b64 v[{106+2*w}:{107+2*w}], v104 offset:{64*w}")
    a("s_waitcnt lgkmcnt(0)")
    a("v_pk_add_f32 v[106:107], v[106:107], v[108:109]")
    a("v_pk_add_f32 v[110:111], v[110:111], v[112:113]")
    a("v_pk_add_f32 v[106:107], v[106:107], v[110:111]")
    a("v_mul_f32 v106, 0x3a800000, v106")
    a("v_mul_f32 v107, 0x3a800000, v107")
    a("v_fma_f32 v107, -v106, v106, v107")
    a("v_add_f32 v107, 0x3727c5ac, v107")
    a("v_rsq_f32 v107, v107")
    a.nop(1)
    a("v_mul_f32 v106, v106, v107")
    a("v_sub_f32 v106, 0, v106")
    for r in range(32):
        a(f"v_fma_f32 v{32+r}, v{32+r}, v107, v106")
    for r in range(16):
        a(f"v_cvt_pk_bf16_f32 v{10+r}, v{32+2*r}, v{33+2*r}")
    a("v_lshrrev_b32 v7, 1, v4")
    a("v_lshl_add_u32 v7, v1, 4, v7")
    a("v_lshlrev_b32 v7, 10, v7")
    a("v_and_b32 v8, 1, v4")
    a("v_lshl_add_u32 v7, v8, 9, v7")
    a("v_lshl_add_u32 v7, v3, 4, v7")
    a("s_lshr_b32 s35, s2, 2")
    a("s_lshl_b32 s35, s35, 16")
    a("s_and_b32 s36, s2, 3")
    a("s_lshl_b32 s36, s36, 7")
    a("s_add_u32 s35, s35, s36")
    for j in range(4):
        a(f"buffer_store_dwordx4 v[{10+4*j}:{13+4*j}], v7, s[20:23], s35 offen")
        if j < 3: a("s_add_u32 s35, s35, 4096")
    a("s_cmp_ge_u32 s2, 224")
    a("s_cbranch_scc1 K0_END")
    a("s_waitcnt vmcnt(4)")
    for e in range(8): a(f"v_mov_b32 v{100+e}, 0")
    for r in range(32):
        p = 32 + 2*(r % 2)
        a(f"v_lshlrev_b32 v{p}, 16, v{64+r}")
        a(f"v_and_b32 v{p+1}, s34, v{64+r}")
        q = 100 + 2*(r % 4)
        a(f"v_pk_add_f32 v[{q}:{q+1}], v[{p}:{p+1}], v[{q}:{q+1}]")
    xreduce(a, list(range(100, 108)), list(range(110, 118)))
    a("v_lshlrev_b32 v104+0, 0, v104".replace("v104+0, 0, v104", "v120, 5, v3"))
    a("v_lshl_add_u32 v120, v1, 8, v120")
    a("ds_write_b128 v120, v[100:103] offset:512")
    a("ds_write_b128 v120, v[104:107] offset:528")
    a("s_waitcnt lgkmcnt(0)")
    a("s_barrier")
    a("v_lshlrev_b32 v121, 2, v2")
    for w in range(4):
        a(f"ds_read_b32 v{122+w}, v121 offset:{512+256*w}")
    a("s_waitcnt lgkmcnt(0)")
    a("v_add_f32 v122, v122, v123")
    a("v_add_f32 v124, v124, v125")
    a("v_add_f32 v122, v122, v124")
    a(f"s_mul_i32 s37, s30, {F_*4}")
    a("s_lshl_b32 s38, s31, 8")
    a("s_add_u32 s37, s37, s38")
    a("s_cmp_lg_u32 s3, 0")
    a("s_cbranch_scc1 K0_END")
    a("buffer_store_dword v122, v121, s[24:27], s37 offen")
    a("K0_END:")
    return Kernel("k0_kernel", a.text(), 256, 256, 2048, 128)
```

```python
from common import *
from gemm import *
from k0 import k0
from attn import attn

QSCALE = (32 ** -0.5) * 1.4426950408889634
import struct
def f2u(x): return struct.unpack("<I", struct.pack("<f", x))[0]

def map_8x4(a):
    a("s_and_b32 s40, s2, 7"); a("s_lshr_b32 s41, s2, 3")
    a("s_and_b32 s12, s40, 1"); a("s_lshl_b32 s12, s12, 3"); a("s_and_b32 s42, s41, 7"); a("s_add_u32 s12, s12, s42")
    a("s_lshr_b32 s13, s40, 1"); a("s_lshl_b32 s13, s13, 2"); a("s_lshr_b32 s42, s41, 3"); a("s_add_u32 s13, s13, s42")
def map_4x8(a):
    a("s_and_b32 s40, s2, 7"); a("s_lshr_b32 s41, s2, 3")
    a("s_and_b32 s12, s40, 3"); a("s_lshl_b32 s12, s12, 2"); a("s_and_b32 s42, s41, 3"); a("s_add_u32 s12, s12, s42")
    a("s_lshr_b32 s13, s40, 2"); a("s_lshl_b32 s13, s13, 3"); a("s_lshr_b32 s42, s41, 2"); a("s_add_u32 s13, s13, s42")

def nothing(a): pass

def qkv():
    c = Cfg()
    c.name = "qkv"; c.K = 1024; c.S = 3; c.layout = 'pair'; c.npair = 3; c.order = 'nat'
    c.WT, c.WF, c.nt, c.nf = 2, 2, 2, 3
    c.tok_off = WS_XN; c.w_arg = KA_WQKV; c.w_rs = 6144
    c.extra_ptrs = []; c.map_tile = map_8x4
    c.bar_at = 1; c.read_gaps = 4; c.stat_bytes = 0; c.vgpr = None; c.prod_extra_vm = 0; c.zero_acc = True
    c.fb_pair = lambda f: (f, 0)
    c.swap = lambda f: f == 2
    def w_wave_part(a): a("s_lshl_b32 s35, s33, 8")
    c.w_wave_part = w_wave_part
    def w_col_base(a):
        a("s_lshl_b32 s36, s13, 7")
        a("s_add_u32 s37, s36, 2048"); a("s_add_u32 s38, s36, 4096")
    c.w_col_base = w_col_base
    c.cons_prologue = nothing; c.prod_prologue = nothing
    def epi(a):
        srd(a, 16, 6, nrec=12*MB)
        a("s_lshl_b32 s36, s13, 1"); a("s_add_u32 s36, s36, s33")
        a("s_lshl_b32 s36, s36, 6")
        a("s_lshl_b32 s37, s12, 2"); a("s_lshl_b32 s38, s32, 1"); a("s_add_u32 s37, s37, s38")
        a("s_add_u32 s36, s36, s37"); a("s_lshl_b32 s36, s36, 11")
        a("v_lshlrev_b32 v3, 4, v2")
        a(f"s_mov_b32 s39, {f2u(QSCALE):#x}")
        P = c.T0
        for f in range(3):
            for t in range(2):
                A = c.acc(t, f)
                if f == 0:
                    for r in range(16): a(f"v_mul_f32 v{A+r}, s39, v{A+r}")
                p = P + (8 if (f*2+t) & 1 else 0)
                for r in range(8): a(f"v_cvt_pk_bf16_f32 v{p+r}, v{A+2*r}, v{A+2*r+1}")
                a(f"s_add_u32 s40, s36, {f*4*MB + t*2048}")
                a(f"buffer_store_dwordx4 {vr(p,4)}, v3, s[16:19], s40 offen")
                a(f"buffer_store_dwordx4 {vr(p+4,4)}, v3, s[16:19], s40 offen offset:1024")
    c.epilogue = epi
    return gemm(c)


def rowmajor_voff(a, v, tmp):
    a(f"v_and_b32 v{v}, 31, v2")
    a(f"v_lshlrev_b32 v{v}, 11, v{v}")
    a(f"v_lshrrev_b32 v{tmp}, 5, v2")
    a(f"v_lshl_add_u32 v{v}, v{tmp}, 4, v{v}")

def small_gemm(name, K, tok_off, w_arg):
    c = Cfg()
    c.name = name; c.K = K; c.S = 5; c.layout = 'pair'; c.npair = 1; c.order = 'dperm'
    c.WT, c.WF, c.nt, c.nf = 4, 1, 1, 2
    c.tok_off = tok_off; c.w_arg = w_arg; c.w_rs = 2048
    c.map_tile = map_4x8
    c.bar_at = 1; c.read_gaps = 2; c.stat_bytes = 0; c.vgpr = 128; c.prod_extra_vm = 0; c.zero_acc = False
    c.fb_pair = lambda f: (0, f)
    c.swap = lambda f: False
    c.w_wave_part = lambda a: a("s_mov_b32 s35, 0")
    c.w_col_base = lambda a: a("s_lshl_b32 s36, s13, 7")
    c.prod_prologue = nothing
    return c

def wo():
    c = small_gemm("wo", 1024, WS_OF, KA_WO)
    c.extra_ptrs = [(8, KA_X)]
    XR = 64
    def pro(a):
        srd(a, 24, 8, nrec=S_*D_*2)
        rowmajor_voff(a, 100, 101)
        a("s_lshl_b32 s36, s12, 2"); a("s_add_u32 s36, s36, s32")
        a("s_lshl_b32 s37, s36, 16")
        a("s_lshl_b32 s38, s13, 7"); a("s_add_u32 s37, s37, s38")
        for f in range(2):
            for s in range(2):
                r = XR + (f*2+s)*4
                a(f"buffer_load_dwordx4 {vr(r,4)}, v100, s[24:27], s37 offen offset:{f*64 + s*32}")
        a("s_mov_b32 s39, 0xffff0000")
        a("s_waitcnt vmcnt(0)")
        for f in range(2):
            for s in range(2):
                r = XR + (f*2+s)*4
                a(f"v_permlane32_swap_b32 v{r}, v{r+2}")
                a(f"v_permlane32_swap_b32 v{r+1}, v{r+3}")
        a.nop(1)
        for f in range(2):
            A = c.acc(0, f)
            for s in range(2):
                r = XR + (f*2+s)*4
                for i in range(4):
                    a(f"v_lshlrev_b32 v{A+8*s+2*i}, 16, v{r+i}")
                    a(f"v_and_b32 v{A+8*s+2*i+1}, s39, v{r+i}")
    c.cons_prologue = pro
    def epi(a):
        srd(a, 16, 6, nrec=42*MB)
        a("v_mov_b32 v102, 0"); a("v_mov_b32 v103, 0"); a("v_mov_b32 v104, 0"); a("v_mov_b32 v105, 0")
        for f in range(2):
            A = c.acc(0, f)
            for r in range(0, 16, 2):
                a(f"v_pk_add_f32 v[102:103], {vr(A+r,2)}, v[102:103]")
                a(f"v_pk_fma_f32 v[104:105], {vr(A+r,2)}, {vr(A+r,2)}, v[104:105]")
        a("v_add_f32 v102, v102, v103"); a("v_add_f32 v103, v104, v105")
        a("v_mov_b32 v104, v102"); a("v_mov_b32 v105, v103")
        a.nop(2)
        a("v_permlane32_swap_b32 v102, v104"); a("v_permlane32_swap_b32 v103, v105")
        a.nop(1)
        a("v_add_f32 v102, v102, v104"); a("v_add_f32 v103, v103, v105")
        a("v_and_b32 v106, 31, v2"); a("v_lshlrev_b32 v106, 3, v106")
        a("s_lshl_b32 s37, s13, 14"); a("s_lshl_b32 s38, s36, 8"); a("s_add_u32 s37, s37, s38")
        a(f"s_add_u32 s37, s37, {WS_PST}")
        a("buffer_store_dwordx2 v[102:103], v106, s[16:19], s37 offen")
        a("v_lshlrev_b32 v3, 4, v2")
        a("s_lshl_b32 s37, s36, 6"); a("s_lshl_b32 s38, s13, 2"); a("s_add_u32 s37, s37, s38"); a("s_lshl_b32 s37, s37, 10")
        a(f"s_add_u32 s37, s37, {WS_HF}")
        for f in range(2):
            A = c.acc(0, f); p = 68 + 8*f
            for r in range(8): a(f"v_cvt_pk_bf16_f32 v{p+r}, v{A+2*r}, v{A+2*r+1}")
            a(f"buffer_store_dwordx4 {vr(p,4)}, v3, s[16:19], s37 offen offset:{2048*f}")
            a(f"buffer_store_dwordx4 {vr(p+4,4)}, v3, s[16:19], s37 offen offset:{2048*f+1024}")
    c.epilogue = epi
    return gemm(c)

def ffn2():
    c = small_gemm("ffn2", 3584, WS_H1F, KA_W2)
    c.extra_ptrs = [(8, KA_B2), (10, KA_OUT)]
    XR = 64; BR = 80
    def pro(a):
        srd(a, 24, 6, add_imm=WS_HF, nrec=4*MB)
        srd(a, 28, 8, nrec=2048)
        a("s_lshl_b32 s36, s12, 2"); a("s_add_u32 s36, s36, s32")
        a("s_lshl_b32 s37, s36, 6"); a("s_lshl_b32 s38, s13, 2"); a("s_add_u32 s37, s37, s38"); a("s_lshl_b32 s37, s37, 10")
        a("v_lshlrev_b32 v100, 4, v2")
        for f in range(2):
            for s in range(2):
                a(f"buffer_load_dwordx4 {vr(XR+(f*2+s)*4,4)}, v100, s[24:27], s37 offen offset:{2048*f+1024*s}")
        a("v_lshrrev_b32 v101, 5, v2"); a("v_lshlrev_b32 v101, 3, v101")
        a("s_lshl_b32 s38, s13, 7")
        for f in range(2):
            for j in range(4):
                a(f"buffer_load_dwordx2 {vr(BR+(f*4+j)*2,2)}, v101, s[28:31], s38 offen offset:{f*64+j*16}")
        a("s_mov_b32 s39, 0xffff0000")
        a("s_waitcnt vmcnt(0)")
        for f in range(2):
            A = c.acc(0, f)
            for r in range(8):
                a(f"v_lshlrev_b32 v{A+2*r}, 16, v{XR+f*8+r}")
                a(f"v_and_b32 v{A+2*r+1}, s39, v{XR+f*8+r}")
                a(f"v_lshlrev_b32 v102, 16, v{BR+f*8+r}")
                a(f"v_and_b32 v103, s39, v{BR+f*8+r}")
                a(f"v_pk_add_f32 {vr(A+2*r,2)}, {vr(A+2*r,2)}, v[102:103]")
    c.cons_prologue = pro
    def epi(a):
        srd(a, 16, 10, nrec=S_*D_*2)
        rowmajor_voff(a, 100, 101)
        a("s_lshl_b32 s37, s36, 16"); a("s_lshl_b32 s38, s13, 7"); a("s_add_u32 s37, s37, s38")
        for f in range(2):
            A = c.acc(0, f); p = 68 + 8*f
            for r in range(8): a(f"v_cvt_pk_bf16_f32 v{p+r}, v{A+2*r}, v{A+2*r+1}")
            a.nop(2)
            for s in range(2):
                a(f"v_permlane32_swap_b32 v{p+4*s}, v{p+4*s+2}")
                a(f"v_permlane32_swap_b32 v{p+4*s+1}, v{p+4*s+3}")
            for s in range(2):
                a(f"buffer_store_dwordx4 {vr(p+4*s,4)}, v100, s[16:19], s37 offen offset:{f*64+s*32}")
    c.epilogue = epi
    return gemm(c)

GA = -2.0*0.7978845608028654*1.4426950408889634
GB = GA*0.044715
def ffn1():
    c = Cfg()
    c.name = "ffn1"; c.K = 1024; c.S = 3; c.layout = 'quad'; c.order = 'dperm'
    c.WT, c.WF, c.nt, c.nf = 4, 1, 1, 7
    c.tok_off = WS_HF; c.w_arg = KA_W1; c.w_rs = 7168
    c.extra_ptrs = [(8, KA_B1)]; c.map_tile = map_8x4
    c.bar_at = 2; c.read_gaps = 5; c.stat_bytes = 2048; c.vgpr = None; c.prod_extra_vm = 0; c.zero_acc = True
    c.swap = lambda f: False
    def w_wave_part(a):
        a("s_and_b32 s35, s13, 1"); a("s_lshl_b32 s35, s35, 8")
    c.w_wave_part = w_wave_part
    def w_col_base(a):
        a("s_mul_i32 s36, s13, 448"); a("s_and_b32 s37, s13, 1"); a("s_lshl_b32 s37, s37, 6"); a("s_sub_u32 s36, s36, s37")
    c.w_col_base = w_col_base
    c.prod_prologue = nothing
    RS_, NM = 200, 201
    def pro(a):
        srd(a, 24, 6, nrec=42*MB)
        srd(a, 28, 8, nrec=F_*2)
        a("s_lshl_b32 s36, s12, 2"); a("s_add_u32 s36, s36, s32")
        a("v_and_b32 v204, 31, v2"); a("v_lshlrev_b32 v204, 3, v204")
        a("v_lshrrev_b32 v205, 5, v2"); a("v_lshl_add_u32 v204, v205, 17, v204")
        a("s_lshl_b32 s37, s36, 8"); a(f"s_add_u32 s37, s37, {WS_PST}")
        for i in range(8):
            a(f"buffer_load_dwordx2 {vr(208+2*i,2)}, v204, s[24:27], s37 offen")
            if i < 7: a("s_add_u32 s37, s37, 16384")
        a("s_mul_i32 s38, s13, 224"); a("s_mul_i32 s39, s32, 56"); a("s_add_u32 s38, s38, s39")
        a("v_min_u32 v206, 55, v2")
        a("v_lshlrev_b32 v205, 2, v206")
        a("s_lshl_b32 s39, s38, 2"); a(f"s_add_u32 s39, s39, {WS_CS1}")
        for i in range(4):
            a(f"buffer_load_dword v{224+i}, v205, s[24:27], s39 offen")
            if i < 3: a(f"s_add_u32 s39, s39, {F_*4}")
        a("v_lshlrev_b32 v207, 1, v206")
        a("s_lshl_b32 s39, s38, 1")
        a("buffer_load_ushort v228, v207, s[28:31], s39 offen")
        a("s_waitcnt vmcnt(5)")
        for i in range(1, 8): a(f"v_pk_add_f32 v[208:209], v[208:209], {vr(208+2*i,2)}")
        a("v_mov_b32 v210, v208"); a("v_mov_b32 v211, v209")
        a.nop(2)
        a("v_permlane32_swap_b32 v208, v210"); a("v_permlane32_swap_b32 v209, v211")
        a.nop(1)
        a("v_add_f32 v208, v208, v210"); a("v_add_f32 v209, v209, v211")
        a("v_mul_f32 v208, 0x3a800000, v208"); a("v_mul_f32 v209, 0x3a800000, v209")
        a("v_fma_f32 v209, -v208, v208, v209")
        a("v_add_f32 v209, 0x3727c5ac, v209")
        a(f"v_rsq_f32 v{RS_}, v209")
        a.nop(1)
        a(f"v_mul_f32 v{NM}, v208, v{RS_}"); a(f"v_sub_f32 v{NM}, 0, v{NM}")
        a("s_waitcnt vmcnt(0)")
        a("v_add_f32 v224, v224, v225"); a("v_add_f32 v226, v226, v227"); a("v_add_f32 v224, v224, v226")
        a("v_lshlrev_b32 v228, 16, v228")
        a("s_mul_i32 s39, s32, 224"); a(f"s_add_u32 s39, s39, {c.STAT}")
        a("v_add_u32 v205, s39, v205")
        a("ds_write_b32 v205, v224"); a("ds_write_b32 v205, v228 offset:1024")
        a("s_waitcnt lgkmcnt(0)")
    c.cons_prologue = pro
    def epi(a):
        srd(a, 16, 6, add_imm=WS_H1F, nrec=S_*F_*2)
        a("v_lshlrev_b32 v3, 4, v2")
        a("v_lshrrev_b32 v4, 5, v2"); a("v_lshlrev_b32 v4, 4, v4"); a(f"v_add_u32 v4, {c.STAT}, v4")
        a("s_mul_i32 s37, s36, 224"); a("s_mul_i32 s38, s13, 14"); a("s_add_u32 s37, s37, s38"); a("s_lshl_b32 s37, s37, 10")
        a(f"s_mov_b32 s40, {f2u(GA):#x}"); a(f"s_mov_b32 s41, {f2u(GA):#x}")
        a(f"s_mov_b32 s42, {f2u(GB):#x}"); a(f"s_mov_b32 s43, {f2u(GB):#x}")
        a("v_mov_b32 v6, 1.0"); a("v_mov_b32 v7, 1.0")
        a(f"v_mov_b32 v202, v{NM}"); a(f"v_mov_b32 v203, v{NM}")
        a(f"v_mov_b32 v204, v{RS_}"); a(f"v_mov_b32 v205, v{RS_}")
        a("v_mov_b32 v206, s42"); a("v_mov_b32 v207, s42"); a("v_mov_b32 v208, s40"); a("v_mov_b32 v209, s40")
        CS, B1 = 8, 24
        def rd(f):
            o = (f & 1)*32
            for j in range(4):
                a(f"ds_read_b128 {vr(CS+o+4*j,4)}, v4 offset:{(32*f+8*j)*4}")
                a(f"ds_read_b128 {vr(B1+o+4*j,4)}, v4 offset:{1024+(32*f+8*j)*4}")
        rd(0)
        for f in range(7):
            o = (f & 1)*32
            if f < 6: rd(f+1); a("s_waitcnt lgkmcnt(8)")
            else: a("s_waitcnt lgkmcnt(0)")
            A = c.acc(0, f); T = 184; p = 212 + 8*(f & 1)
            for g in range(2):
                R = range(8*g, 8*g+8, 2)
                for r in R: a(f"v_pk_fma_f32 {vr(CS+o+r,2)}, {vr(CS+o+r,2)}, v[202:203], {vr(B1+o+r,2)}")
                for r in R: a(f"v_pk_fma_f32 {vr(A+r,2)}, {vr(A+r,2)}, v[204:205], {vr(CS+o+r,2)}")
                for r in R: a(f"v_pk_mul_f32 {vr(T+r-8*g,2)}, {vr(A+r,2)}, {vr(A+r,2)}")
                for r in R: a(f"v_pk_fma_f32 {vr(T+r-8*g,2)}, {vr(T+r-8*g,2)}, v[206:207], v[208:209]")
                for r in R: a(f"v_pk_mul_f32 {vr(T+r-8*g,2)}, {vr(T+r-8*g,2)}, {vr(A+r,2)}")
                for r in range(8): a(f"v_exp_f32 v{T+r}, v{T+r}")
                for r in R: a(f"v_pk_add_f32 {vr(T+r-8*g,2)}, {vr(T+r-8*g,2)}, v[6:7]")
                for r in range(8): a(f"v_rcp_f32 v{T+r}, v{T+r}")
                for r in R: a(f"v_pk_mul_f32 {vr(A+r,2)}, {vr(A+r,2)}, {vr(T+r-8*g,2)}")
                for r in R: a(f"v_cvt_pk_bf16_f32 v{p+r//2}, v{A+r}, v{A+r+1}")
            a(f"s_add_u32 s38, s37, {f*2048}")
            a(f"buffer_store_dwordx4 {vr(p,4)}, v3, s[16:19], s38 offen")
            a(f"buffer_store_dwordx4 {vr(p+4,4)}, v3, s[16:19], s38 offen offset:1024")
    c.epilogue = epi
    return gemm(c)

def all_kernels(sel=None):
    ks = [k0(), qkv(), attn(), wo(), ffn1(), ffn2()]
    return ks
```

```python
import sys
from common import *
import kernels
from asmlib import lint
ks = kernels.all_kernels(sys.argv[2:] if len(sys.argv) > 2 else None)
bad = 0
for k in ks:
    errs = lint(k.body, k.name)
    import re
    for m in re.finditer(r"^(\w+LOOP):$", k.body, re.M):
        lab = m.group(1); j = k.body.find("s_cbranch_scc1 " + lab, m.end())
        if j > 0:
            body = k.body[m.end():j]
            errs += lint(body + body, k.name + ":" + lab)
    for e in errs[:20]: print(e)
    bad += len(errs)
txt = build_file(ks)
out = sys.argv[1] if len(sys.argv) > 1 else "cur.s"
open(out, "w").write(txt)
print("wrote", out, len(txt), "bytes; lint errors:", bad)
```
